```python
import torch

def _softmax(x, axis=-1):
    return torch.softmax(x, dim=axis)
def _gelu(x):
    return torch.nn.functional.gelu(x, approximate="tanh")
def _silu(x):
    return torch.nn.functional.silu(x)
def _sigmoid(x):
    return torch.sigmoid(x)
def _layernorm(x, axis=-1, eps=1e-5):
    m = x.mean(dim=axis, keepdim=True)
    v = x.var(dim=axis, keepdim=True, unbiased=False)
    return (x - m) / torch.sqrt(v + eps)
def _scatter_add(tgt, idx, src, axis=0):
    return tgt.clone().index_add_(axis, idx, src)
def _segment_sum(src, seg, n):
    out = torch.zeros((n,) + src.shape[1:], dtype=src.dtype)
    return out.index_add_(0, seg, src)
def _pad(x, pw):
    flat = tuple(v for pair in reversed(pw) for v in pair)
    return torch.nn.functional.pad(x, flat)

kernel_name = 'parallel_sum__grouped_kv_mqa__glu_gated_swiglu__prompt'

def setup_inputs():

    _w = (lambda a: (lambda t: t.to(torch.bfloat16) if t.is_floating_point() else t)(torch.as_tensor(a)))
    def _A_setup():
        B, S, D, H = 1, 2048, 576, 32
        Dh = D // H
        return {
            "x": _w((lambda *s: torch.randn(*s, dtype=torch.bfloat16) * 0.05)(B, S, D)),
            "wq": _w((lambda *s: torch.randn(*s, dtype=torch.bfloat16) * 0.05)(D, H * Dh)),
            "wk": _w((lambda *s: torch.randn(*s, dtype=torch.bfloat16) * 0.05)(D, Dh)),
            "wv": _w((lambda *s: torch.randn(*s, dtype=torch.bfloat16) * 0.05)(D, Dh)),
            "wo": _w((lambda *s: torch.randn(*s, dtype=torch.bfloat16) * 0.05)(H * Dh, D)),
        }
    _A_in = _A_setup()

    def _B_setup():
        B, S, D, F = 1, 2048, 576, 4608
        return {
            "x": _w((lambda *s: torch.randn(*s, dtype=torch.bfloat16) * 0.05)(B, S, D)),
            "w1": _w((lambda *s: torch.randn(*s, dtype=torch.bfloat16) * 0.4)(D, F) * (2.0 / D) ** 0.5),
            "w3": _w((lambda *s: torch.randn(*s, dtype=torch.bfloat16) * 0.4)(D, F) * (2.0 / D) ** 0.5),
            "w2": _w((lambda *s: torch.randn(*s, dtype=torch.bfloat16) * 0.4)(F, D) * (2.0 / F) ** 0.5),
        }
    _B_in = _B_setup()

    return {
        "A_x": _A_in["x"],
        "A_wq": _A_in["wq"],
        "A_wk": _A_in["wk"],
        "A_wv": _A_in["wv"],
        "A_wo": _A_in["wo"],
        "B_x": _B_in["x"],
        "B_w1": _B_in["w1"],
        "B_w3": _B_in["w3"],
        "B_w2": _B_in["w2"],
    }

def reference(A_x, A_wq, A_wk, A_wv, A_wo, B_x, B_w1, B_w3, B_w2):
    def _A_ref(x, wq, wk, wv, wo):
        B, S, D = x.shape
        H = 32
        Dh = D // H
        q = (lambda x, *d: x.permute(*d))((x @ wq).reshape(B, S, H, Dh), 0, 2, 1, 3)
        k = x @ wk
        v = x @ wv
        scores = torch.einsum("bhqd,bkd->bhqk", q, k) * (Dh ** -0.5)
        p = _softmax(scores, axis=-1)
        o = torch.einsum("bhqk,bkd->bhqd", p, v)
        return (lambda x, *d: x.permute(*d))(o, 0, 2, 1, 3).reshape(B, S, H * Dh) @ wo

    def _B_ref(x, w1, w3, w2):
        gate = torch.einsum("bsd,df->bsf", x, w1)
        up = torch.einsum("bsd,df->bsf", x, w3)
        h = _silu(gate) * up
        out = torch.einsum("bsf,fd->bsd", h, w2)
        return out

    x = A_x
    xn = _layernorm(x, axis=-1)
    return x + _A_ref(xn, A_wq, A_wk, A_wv, A_wo) + _B_ref(xn, B_w1, B_w3, B_w2)
```

```python
import re

class K:
    def __init__(self, name):
        self.name = name
        self.lines = []
        self.vm = []
        self.lg = []
        self.uid = 0
    def e(self, s):
        self.lines.append("    " + s)
    def c(self, s):
        self.lines.append("    ; " + s)
    def label(self, l):
        self.lines.append(l + ":")
    def newlabel(self, p="L"):
        self.uid += 1
        return f"{p}_{self.name}_{self.uid}"
    def vmem(self, s, tag=None):
        self.e(s); self.vm.append(tag)
    def lds(self, s, tag=None):
        self.e(s); self.lg.append(tag)
    def _need(self, q, tags):
        idx = [i for i, t in enumerate(q) if t in tags]
        if not idx: return None
        return len(q) - 1 - max(idx)
    def wait_vm(self, *tags):
        n = self._need(self.vm, set(tags))
        if n is None: return
        assert n <= 63, n
        self.e(f"s_waitcnt vmcnt({n})")
        self.vm = self.vm[len(self.vm) - n:] if n else []
    def wait_lg(self, *tags):
        n = self._need(self.lg, set(tags))
        if n is None: return
        n = min(n, 15)
        self.e(f"s_waitcnt lgkmcnt({n})")
        self.lg = self.lg[len(self.lg) - n:] if n else []
    def wait_all(self):
        self.e("s_waitcnt vmcnt(0) lgkmcnt(0)"); self.vm = []; self.lg = []
    def wait_vm0(self):
        self.e("s_waitcnt vmcnt(0)"); self.vm = []
    def wait_lg0(self):
        self.e("s_waitcnt lgkmcnt(0)"); self.lg = []
    def srd(self, d, base, nbytes, off=0):
        if off:
            self.e(f"s_add_u32 s{d}, s{base}, {off}")
            self.e(f"s_addc_u32 s{d+1}, s{base+1}, 0")
        else:
            self.e(f"s_mov_b32 s{d}, s{base}")
            self.e(f"s_mov_b32 s{d+1}, s{base+1}")
        self.e(f"s_mov_b32 s{d+2}, {nbytes}")
        self.e(f"s_mov_b32 s{d+3}, 0x00020000")
    def text(self, nvgpr, nsgpr=102):
        acc = (nvgpr + 3) // 4 * 4
        s = f".globl {self.name}\n.p2align 8\n.type {self.name},@function\n{self.name}:\n"
        s += "\n".join(self.lines) + "\n"
        kd = f""".section .rodata,"a"
.p2align 6
.amdhsa_kernel {self.name}
  .amdhsa_next_free_vgpr {nvgpr}
  .amdhsa_next_free_sgpr {nsgpr}
  .amdhsa_accum_offset {acc}
  .amdhsa_group_segment_fixed_size 0
  .amdhsa_kernarg_size 96
  .amdhsa_user_sgpr_count 2
  .amdhsa_user_sgpr_kernarg_segment_ptr 1
  .amdhsa_system_sgpr_workgroup_id_x 1
.end_amdhsa_kernel
.text
"""
        return s, kd

def vr(a, n=1):
    return f"v{a}" if n == 1 else f"v[{a}:{a+n-1}]"
def sr(a, n=1):
    return f"s{a}" if n == 1 else f"s[{a}:{a+n-1}]"

_reg = re.compile(r"\b([vs])(\d+)\b|\b([vs])\[(\d+):(\d+)\]|\b(vcc|exec|m0)\b")
def regs(op):
    out = set()
    for m in _reg.finditer(op):
        if m.group(1): out.add((m.group(1), int(m.group(2))))
        elif m.group(3):
            for i in range(int(m.group(4)), int(m.group(5)) + 1): out.add((m.group(3), i))
        else: out.add((m.group(6), 0))
    return out
TRANS = ("v_exp_", "v_rcp_", "v_rsq_", "v_sqrt_", "v_log_", "v_sin_", "v_cos_")
def parse(line):
    line = line.split(";")[0].strip()
    if not line or line.endswith(":") or line.startswith("."): return None
    parts = line.split(None, 1)
    op = parts[0]
    ops = [o.strip() for o in parts[1].split(",")] if len(parts) > 1 else []
    return op, ops
def passes(op):
    if "32x32x16" in op or "32x32x8" in op: return 8
    if "16x16x32" in op or "16x16x16" in op: return 4
    raise ValueError(op)
def check_hazards(lines, name=""):
    ins = []; lidx = []
    for li, ln in enumerate(lines):
        p = parse(ln)
        if p: ins.append((p[0], p[1], ln.strip())); lidx.append(li)
    errs = []
    pos = []; t = 0
    for op, ops, ln in ins:
        pos.append(t)
        t += (int(ops[0], 0) + 1) if op == "s_nop" else 1
    def info(op, ops):
        if op.startswith("v_mfma"):
            return regs(ops[0]), regs(ops[1]) | regs(ops[2]), regs(ops[3]), "mfma"
        if op.startswith("v_cmp"):
            w = regs(ops[0]);
            if op.startswith("v_cmpx"): w = w | {("exec", 0)}
            return w, set().union(*[regs(o) for o in ops[1:]]), set(), "valu"
        if op.startswith("v_permlane") and "swap" in op:
            r = regs(ops[0]) | regs(ops[1]); return r, r, set(), "valu"
        if op.startswith("v_"):
            w = regs(ops[0]); rd = set().union(*[regs(o) for o in ops[1:]]) if len(ops) > 1 else set()
            if "_co_" in op or op.startswith("v_div_scale"): w = w | regs(ops[1])
            if op.startswith("v_fmac") or op.startswith("v_dot2c") or "dpp" in " ".join(ops) or "row_" in " ".join(ops) or "quad_perm" in " ".join(ops) or "UNUSED_PRESERVE" in " ".join(ops): rd = rd | regs(ops[0])
            if op.startswith("v_cndmask") and len(ops) == 3: rd = rd | {("vcc", 0)}
            return w, rd, set(), "valu"
        if op.startswith("buffer_") or op.startswith("global_"):
            allr = set().union(*[regs(o) for o in ops])
            if "load" in op and " lds" not in (" " + " ".join(ops)) and "_lds_" not in op:
                w = regs(ops[0]); return w, set().union(*[regs(o) for o in ops[1:]]), set(), "vmem"
            return set(), allr, set(), "vmem"
        if op.startswith("ds_"):
            if "read" in op or "permute" in op or "swizzle" in op:
                return regs(ops[0]), set().union(*[regs(o) for o in ops[1:]]), set(), "ds"
            return set(), set().union(*[regs(o) for o in ops]), set(), "ds"
        if op.startswith("s_"):
            if op in ("s_waitcnt", "s_nop", "s_barrier", "s_endpgm", "s_branch", "s_setprio", "s_sleep") or op.startswith("s_cbranch") or op.startswith("s_cmp"):
                return set(), set().union(*[regs(o) for o in ops]) if ops and op.startswith("s_cmp") else set(), set(), "salu"
            w = regs(ops[0]) if ops else set()
            if "saveexec" in op: w = w | {("exec", 0)}
            return w, set().union(*[regs(o) for o in ops[1:]]) if len(ops) > 1 else set(), set(), "salu"
        return set(), set(), set(), "other"
    inf = [info(op, ops) for op, ops, ln in ins]
    W = 24
    for j in range(len(ins)):
        opj, opsj, lnj = ins[j]; wj, rj, cj, kj = inf[j]
        txtj = " ".join(opsj)
        for i in range(j - 1, max(-1, j - W - 1), -1):
            opi, opsi, lni = ins[i]; wi, ri, ci, ki = inf[i]
            d = pos[j] - pos[i] - 1 if opi != "s_nop" else 99
            d = pos[j] - (pos[i] + 1)
            need = 0
            vw = {x for x in wi if x[0] == "v"}; sw = {x for x in wi if x[0] in ("s", "vcc")}
            if ki == "valu":
                if kj == "mfma" and vw & (rj | cj): need = max(need, 2)
                if kj == "mfma" and ("exec", 0) in wi: need = max(need, 4)
                if opi.startswith(TRANS) and kj in ("valu",) and not opj.startswith(TRANS) and vw & rj: need = max(need, 1)
                if opi.startswith(TRANS) and kj in ("valu",) and opj.startswith(TRANS) and vw & rj: need = max(need, 1)
                if kj == "valu" and ("row_" in txtj or "quad_perm" in txtj or "dpp" in opj) and vw & rj: need = max(need, 2)
                if kj == "valu" and ("exec", 0) in wi and ("row_" in txtj or "quad_perm" in txtj): need = max(need, 5)
                if opj.startswith("v_permlane") and vw & rj: need = max(need, 2)
                if (opj.startswith("v_readlane") or opj.startswith("v_readfirstlane")) and vw & rj: need = max(need, 1)
                if kj == "vmem" and sw & rj: need = max(need, 5)
                if kj == "valu" and sw & rj: need = max(need, 2)
                if (opj.startswith("v_readlane") or opj.startswith("v_writelane")) and sw & rj: need = max(need, 4)
                if ("sdwa" in opi or "op_sel" in " ".join(opsi)) and kj == "valu" and vw & (rj | wj): need = max(need, 1)
            if ki == "mfma":
                p = passes(opi)
                tab = {4: (0, 6, 8, 8, 3), 8: (0, 10, 12, 12, 7)}[p]
                if kj == "mfma":
                    if wi & cj:
                        if wi == cj and passes(opj) == p: need = max(need, tab[0])
                        else: need = max(need, tab[1])
                    if wi & rj: need = max(need, tab[2])
                    if wi & wj and not (wi & cj): need = max(need, tab[1])
                if kj in ("valu", "vmem", "ds") and wi & (rj | wj): need = max(need, tab[3])
                if kj == "valu" and ci & wj: need = max(need, tab[4])
            if ki == "vmem" and "store" in opi and ("x4" in opi or "x3" in opi):
                if kj == "valu" and regs(opsi[0] if opi.startswith("buffer") else opsi[1]) & wj: need = max(need, 2)
            if ki == "salu" and ("m0", 0) in wi and kj == "vmem" and (" lds" in (" " + txtj) or "_lds_" in opj): need = max(need, 1)
            if d < need:
                errs.append((lidx[j], need - d, f"[{name}] hazard need {need} have {d}:\n    {lni}\n    {lnj}"))
    return errs
def fix_hazards(lines, name="", verbose=True):
    n = 0
    while True:
        errs = check_hazards(lines, name)
        if not errs: return n
        last = -100; ins = []
        best = {}
        for li, df, msg in errs:
            if li not in best or df > best[li][0]: best[li] = (df, msg)
        for li in sorted(best):
            if li - last > 40:
                ins.append((li, best[li][0])); last = li
                if verbose: print(best[li][1])
        for li, df in reversed(ins):
            lines.insert(li, f"    s_nop {df-1}")
            n += 1
```

```python
import sys, math
from fw import *

NAME = "parallel_sum__grouped_kv_mqa__glu_gated_swiglu__prompt"
WS_BYTES = 268435456
XN   = 0x0000000
HF   = 0x0300000
QN   = 0x1500000
KV   = 0x1800000
KN   = 0x1840000
OF   = 0x1900000
WOF  = 0x1C00000
PART = 0x1D00000
LOG2E = 1.4426950408889634
import struct
def f32(x): return "0x%08x" % struct.unpack("<I", struct.pack("<f", x))[0]

import os
STAMP = int(os.environ.get("STAMP", "0"))
DBG = 0x3000000
PROBAR = int(os.environ.get("PROBAR", "1"))
ROT = int(os.environ.get("ROT", "1"))
HST = os.environ.get("HST", "")
def stamp(k, v, lane):
    if not STAMP or (STAMP == 2 and lane < 30): return
    k.e("s_memtime s[90:91]")
    k.wait_lg0()
    k.e(f"v_writelane_b32 v{v}, s90, {lane}")
def rstamp(k, v, lane):
    if not STAMP: return
    k.e("s_memrealtime s[90:91]")
    k.wait_lg0()
    k.e(f"v_writelane_b32 v{v}, s90, {lane}")
def stamp_dump(k, vs, srd, wavereg="s3"):
    if not STAMP: return
    k.e("s_lshl_b32 s92, s2, 3")
    k.e(f"s_add_u32 s92, s92, {wavereg}")
    k.e("s_lshl_b32 s92, s92, 10")
    k.e(f"s_add_u32 s92, s92, {DBG}")
    k.e("v_mbcnt_lo_u32_b32 v0, -1, 0")
    k.e("v_mbcnt_hi_u32_b32 v0, -1, v0")
    k.e("v_lshlrev_b32 v0, 2, v0")
    for i, v in enumerate(vs):
        k.e(f"buffer_store_dword v{v}, v0, s[{srd}:{srd+3}], s92 offen offset:{i*256}")

def dpp_reduce(k, op, v, full=True):
    for m in ("row_shr:1", "row_shr:2", "row_shr:4", "row_shr:8"):
        k.e("s_nop 1")
        k.e(f"{op} v{v}, v{v}, v{v} {m} row_mask:0xf bank_mask:0xf bound_ctrl:0")
    k.e("s_nop 1")
    k.e(f"{op} v{v}, v{v}, v{v} row_bcast:15 row_mask:0xa bank_mask:0xf")
    if full:
        k.e("s_nop 1")
        k.e(f"{op} v{v}, v{v}, v{v} row_bcast:31 row_mask:0xc bank_mask:0xf")

def k0():
    k = K("ln_kernel")
    k.e("s_cmp_ge_u32 s2, 256")
    k.e("s_cbranch_scc1 L_ln_end")
    k.e("s_load_dwordx2 s[4:5], s[0:1], 0")
    k.e("s_load_dwordx2 s[6:7], s[0:1], 88")
    k.e("v_lshrrev_b32 v1, 6, v0")
    k.e("v_and_b32 v2, 63, v0")
    k.e("v_readfirstlane_b32 s3, v1")
    k.e("s_lshl_b32 s16, s2, 3")
    k.e("s_add_u32 s16, s16, s3")
    k.e("s_mul_i32 s17, s16, 1152")
    k.e("v_lshlrev_b32 v3, 4, v2")
    k.e("v_cmp_gt_u32 vcc, 8, v2")
    k.e("v_mov_b32 v13, 0x7ff00000")
    k.e("v_add_u32 v12, 1024, v3")
    k.e("v_cndmask_b32 v12, v13, v12, vcc")
    k.e("s_waitcnt lgkmcnt(0)")
    k.srd(8, 4, 2048 * 1152)
    k.srd(12, 6, WS_BYTES)
    k.e("buffer_load_dwordx4 v[4:7], v3, s[8:11], s17 offen")
    k.e("buffer_load_dwordx4 v[8:11], v12, s[8:11], s17 offen")
    k.e("v_lshrrev_b32 v14, 1, v2")
    k.e("v_lshlrev_b32 v14, 10, v14")
    k.e("v_and_b32 v15, 1, v2")
    k.e("v_lshlrev_b32 v15, 9, v15")
    k.e("v_add_u32 v14, v14, v15")
    k.e("v_add_u32 v15, 0x8000, v14")
    k.e("v_cndmask_b32 v15, v13, v15, vcc")
    k.e("s_lshr_b32 s18, s16, 5")
    k.e("s_mul_i32 s18, s18, 36864")
    k.e("s_and_b32 s19, s16, 31")
    k.e("s_lshl_b32 s19, s19, 4")
    k.e("s_add_u32 s18, s18, s19")
    k.e("s_waitcnt vmcnt(0)")
    for i in range(8):
        k.e(f"v_lshlrev_b32 v{16+2*i}, 16, v{4+i}")
        k.e(f"v_and_b32 v{17+2*i}, 0xffff0000, v{4+i}")
    k.e("v_add_f32 v32, v16, v17")
    k.e("v_add_f32 v33, v18, v19")
    for i in range(4, 16, 2):
        k.e(f"v_add_f32 v32, v32, v{16+i}")
        k.e(f"v_add_f32 v33, v33, v{17+i}")
    k.e("v_add_f32 v32, v32, v33")
    dpp_reduce(k, "v_add_f32", 32)
    k.e("s_nop 0")
    k.e("v_readlane_b32 s20, v32, 63")
    k.e(f"v_mov_b32 v34, {f32(1.0/576)}")
    k.e("s_nop 0")
    k.e("v_mul_f32 v34, s20, v34")
    for i in range(16):
        k.e(f"v_sub_f32 v{40+i}, v{16+i}, v34")
    k.e("v_mul_f32 v32, v40, v40")
    k.e("v_mul_f32 v33, v48, v48")
    for i in range(1, 8):
        k.e(f"v_fmac_f32 v32, v{40+i}, v{40+i}")
        k.e(f"v_fmac_f32 v33, v{48+i}, v{48+i}")
    k.e("v_cndmask_b32 v33, 0, v33, vcc")
    k.e("v_add_f32 v32, v32, v33")
    dpp_reduce(k, "v_add_f32", 32)
    k.e("s_nop 0")
    k.e("v_readlane_b32 s20, v32, 63")
    k.e(f"v_mov_b32 v35, {f32(1.0/576)}")
    k.e("s_nop 0")
    k.e("v_mul_f32 v35, s20, v35")
    k.e("v_cvt_pk_bf16_f32 v35, v35, v34")
    k.e("v_and_b32 v34, 0xffff0000, v35")
    k.e("v_lshlrev_b32 v35, 16, v35")
    k.e(f"v_add_f32 v35, {f32(1e-5)}, v35")
    k.e("v_cvt_pk_bf16_f32 v35, v35, v35")
    k.e("v_lshlrev_b32 v35, 16, v35")
    k.e("v_sqrt_f32 v35, v35")
    k.e("s_nop 0")
    k.e("v_cvt_pk_bf16_f32 v35, v35, v35")
    k.e("v_lshlrev_b32 v35, 16, v35")
    k.e("v_rcp_f32 v35, v35")
    for i in range(16):
        k.e(f"v_sub_f32 v{40+i}, v{16+i}, v34")
    for i in range(16):
        k.e(f"v_mul_f32 v{40+i}, v{40+i}, v35")
    for i in range(8):
        k.e(f"v_cvt_pk_bf16_f32 v{4+i}, v{40+2*i}, v{41+2*i}")
    k.e("buffer_store_dwordx4 v[4:7], v14, s[12:15], s18 offen")
    k.e("buffer_store_dwordx4 v[8:11], v15, s[12:15], s18 offen")
    k.label("L_ln_end")
    k.e("s_endpgm")
    return k, 56

X0, ACC0, T0, AF0 = 112, 48, 32, 12
NAF = 5
SLOT = 16448
NSLOT = 8
VL16 = 0
FRATE = int(os.environ.get("FRATE", "3"))
LAGS = [float(x) for x in os.environ.get("LAGS", "0,1.25,2.5,3.75").split(",")]
WT = int(os.environ.get("WT", "2"))
def k1_plan(role):
    NST = 27
    eplen = {"ffn": 53, "q": 10, "kv": 10}[role]
    ndrain = {"ffn": 16, "q": 8, "kv": 8}[role]
    nxt = [0, 0, 0, 0]; last = [26, 26, 17, 17]
    ev = []
    issued = {0: -2, 1: -1}
    cert = set()
    nb = 0
    t = 0
    fill_free = 0
    acc_ready = [0, 0, 0, 0]
    since = 99
    first = True
    def barrier():
        nonlocal nb, since
        c = [s for s, b in issued.items() if s not in cert and nb - b >= WT]
        cert.update(c)
        iss = []
        while True:
            tnew = max(issued) + 1
            if tnew >= NST: break
            old = tnew - NSLOT
            if any(nxt[u] <= old and old <= last[u] for u in range(4)): break
            lim = 1 if tnew < 9 else 2
            if len(iss) >= lim: break
            if iss and iss[0] < 9: pass
            issued[tnew] = nb; iss.append(tnew)
        ev.append(("bar", sorted(c), iss))
        nb += 1; since = 0
    while any(nxt[u] <= last[u] for u in range(4)):
        allcert = len(cert) == NST
        cand = [u for u in range(4) if nxt[u] <= last[u] and nxt[u] in cert and (nxt[u] % 9 != 0 or acc_ready[u] <= t)]
        per = 2 if nb == 1 else 4
        if not allcert and (since >= per or not cand):
            had = len(cert)
            barrier()
            if not cand and len(cert) == had and not ev[-1][2]:
                ev.pop(); nb -= 1
                ev.append(("idle",)); t = min(acc_ready[u] for u in range(4) if nxt[u] <= last[u] and nxt[u] in cert); since = 0
            continue
        if not cand:
            ev.append(("idle",)); t = min(acc_ready[u] for u in range(4) if nxt[u] <= last[u]); continue
        if ev[-1][0] == "bar":
            c2 = [u for u in cand if nxt[u] not in ev[-1][1]]
            if c2: cand = c2
        u = min(cand, key=lambda u: (nxt[u] + LAGS[u], u))
        s = nxt[u]
        ev.append(("blk", u, s)); nxt[u] += 1; t += 4; since += 1
        if s % 9 == 8:
            st = max(fill_free, t + 2)
            acc_ready[u] = st + -(-ndrain // FRATE) + 1
            fill_free = st + -(-eplen // FRATE)
    return ev

def k1_stream(k, role):
    NST = 27
    def stage_ops(s):
        slot = (s % NSLOT) * SLOT
        gs = 80 + s % 9
        G = []
        if s < 18:
            g = s // 9
            a, b = (32, 33) if g == 0 else (34, 35)
            G.append([f"s_mul_i32 s78, s{gs}, s37", f"s_add_u32 m0, s6, {slot}", f"s_add_u32 s79, s78, s{a}",
                      (f"buffer_load_dwordx4 v1, s[8:11], s79 offen lds", ("st", s))])
            G.append([f"s_add_u32 m0, s6, {slot + 8256}", f"s_add_u32 s79, s78, s{b}",
                      (f"buffer_load_dwordx4 v1, s[12:15], s79 offen lds", ("st", s))])
        else:
            G.append([f"s_mul_i32 s78, s{gs}, s38", f"s_add_u32 m0, s7, {slot}", f"s_add_u32 s79, s78, s36",
                      (f"buffer_load_dwordx4 v2, s[16:19], s79 offen lds", ("st", s))])
        if s < 9:
            for j in range(4):
                kk = 4 * s + j
                pre = [f"s_lshl_b32 s77, s{gs}, 12", f"s_add_u32 s77, s77, s39"] if j == 0 else []
                G.append(pre + [(f"buffer_load_dwordx4 {vr(X0 + 4*kk, 4)}, v0, s[24:27], s77 offen offset:{j*1024}", ("st", s))])
        return G
    def emit_group(G):
        for op in G:
            if isinstance(op, tuple): k.vmem(op[0], op[1])
            else: k.e(op)
    ev = k1_plan(role)
    certat = {}
    flat = []
    for ei, e_ in enumerate(ev):
        if e_[0] == "bar":
            for s in e_[1]: certat[s] = ei
        elif e_[0] == "blk":
            for j in range(4): flat.append((e_[1], e_[2], j))
    D = NAF - 1
    def reads(idx):
        u, s, j = flat[idx]
        buf = AF0 + 4 * (idx % NAF)
        slot = s % NSLOT
        win = slot // 4
        so = (slot % 4) * SLOT
        out = []
        for i in range(2):
            if s < 18:
                va = 3 + 2 * win + (u & 1)
                off = so + (16 * j + 4 * i) * 128 + (u >> 1) * 64
            else:
                va = 7 + win
                off = so + (16 * j + 4 * i) * 64 + u * (4128 if role == "kv" else 32)
            assert off < 65536
            out.append(f"ds_read_b64_tr_b16 {vr(buf + 2*i, 2)}, v{va} offset:{off}")
        return out
    def epilogue(u, g):
        A = ACC0 + 16 * u
        ops = []
        if role == "ffn":
            for i in range(8): ops.append(f"v_mul_f32 v{T0+8+i}, v{A+i}, v{A+8+i}")
            for i in range(8): ops.append(f"v_mul_f32 v{T0+i}, s46, v{A+i}")
            for i in range(8): ops.append(f"v_exp_f32 v{T0+i}, v{T0+i}")
            for i in range(8): ops.append(f"v_add_f32 v{T0+i}, 1.0, v{T0+i}")
            for i in range(8): ops.append(f"v_rcp_f32 v{T0+i}, v{T0+i}")
            for i in range(8): ops.append(f"v_mul_f32 v{T0+8+i}, v{T0+8+i}, v{T0+i}")
            for i in range(4): ops.append(f"v_cvt_pk_bf16_f32 v{T0+i}, v{T0+8+2*i}, v{T0+9+2*i}")
            ops.append(("vm", f"buffer_store_dwordx4 {vr(T0,4)}, v0, s[24:27], s{40+g} offen offset:{u*1024} {HST}"))
        elif role == "q" or g < 2:
            TT = T0 + 8 * (u & 1)
            for i in range(8): ops.append(f"v_cvt_pk_bf16_f32 v{TT+i}, v{A+2*i}, v{A+2*i+1}")
            ops.append(("vm", f"buffer_store_dwordx4 {vr(TT,4)}, v0, s[24:27], s{40+g} offen offset:{u*1024} {HST}"))
            ops.append(("vm", f"buffer_store_dwordx4 {vr(TT+4,4)}, v0, s[24:27], s{43+g} offen offset:{u*1024} {HST}"))
        elif u == 0:
            B = ACC0 + 32
            for i in range(10): ops.append(f"v_mul_f32 v{A+i}, s46, v{A+i}")
            for i in range(5): ops.append(f"v_cvt_pk_bf16_f32 v{T0+i}, v{A+2*i}, v{A+2*i+1}")
            ops.append(("vm", f"buffer_store_dwordx4 {vr(T0,4)}, v0, s[24:27], s42 offen {HST}"))
            ops.append(f"v_lshrrev_b32 v{B}, 2, v0")
            ops.append(("vm", f"buffer_store_dword v{T0+4}, v{B}, s[24:27], s45 offen {HST}"))
            ops.append(f"v_mul_f32 v{T0+5}, v{A}, v{A}")
            for i in range(1, 8): ops.append(f"v_fmac_f32 v{T0+5}, v{A+i}, v{A+i}")
            ops.append(f"v_mul_f32 v{T0+6}, v{A+8}, v{A+8}")
            ops.append(f"v_fmac_f32 v{T0+6}, v{A+9}, v{A+9}")
            ops.append("v_cmp_gt_u32 vcc, 512, v0")
            ops.append("s_nop 1")
            ops.append(f"v_cndmask_b32 v{T0+6}, 0, v{T0+6}, vcc")
            ops.append(f"v_add_f32 v{T0+5}, v{T0+5}, v{T0+6}")
            ops.append(f"v_mov_b32 v{T0+6}, v{T0+5}")
            ops.append("s_nop 1")
            ops.append(f"v_permlane32_swap_b32 v{T0+5}, v{T0+6}")
            ops.append(f"v_add_f32 v{T0+5}, v{T0+5}, v{T0+6}")
            kk = K("tmp"); dpp_reduce(kk, "v_max_f32", T0+5, full=False)
            ops += [l.strip() for l in kk.lines]
            ops.append("s_nop 0")
            ops.append(f"v_readlane_b32 s47, v{T0+5}, 31")
            ops.append(f"v_mov_b32 v{B+1}, 0")
            ops.append("s_nop 0")
            ops.append(f"v_mov_b32 v{T0+5}, s47")
            ops.append(("vm", f"buffer_store_dword v{T0+5}, v{B+1}, s[24:27], s48 offen {HST}"))
        else:
            B = ACC0 + 36
            for i in range(8): ops.append(f"v_cvt_pk_bf16_f32 v{T0+8+i}, v{A+2*i}, v{A+2*i+1}")
            ops.append(f"v_and_b32 v{B}, 0x1f0, v0")
            ops.append(f"v_cmp_eq_u32 vcc, {18*16}, v{B}")
            ops.append(f"v_mov_b32 v{B+1}, 0x3f803f80")
            ops.append("s_nop 0")
            ops.append(f"v_cndmask_b32 v{B+1}, 0, v{B+1}, vcc")
            ops.append(f"v_cmp_gt_u32 vcc, {18*16}, v{B}")
            ops.append("s_nop 1")
            for i in range(8): ops.append(f"v_cndmask_b32 v{T0+8+i}, v{B+1}, v{T0+8+i}, vcc")
            ops.append(("vm", f"buffer_store_dwordx4 {vr(T0+8,4)}, v0, s[24:27], s42 offen offset:1024 {HST}"))
            ops.append(("vm", f"buffer_store_dwordx4 {vr(T0+12,4)}, v0, s[24:27], s42 offen offset:2048 {HST}"))
        return ops
    rstamp(k, 9, 32)
    stamp(k, 9, 31)
    for s in range(2):
        for G in stage_ops(s): emit_group(G)
        if PROBAR and s < 1: k.e("s_barrier")
    nread = 0
    fill = []
    dmaq = []
    def emit_fill(n, idx):
        cnt = 0
        while fill and cnt < n and fill[0][0] <= idx:
            op = fill.pop(0)[1]
            if isinstance(op, tuple): k.vmem(op[1], "st_out")
            else: k.e(op)
            cnt += 1
    idx = 0; nbar = 0
    for ei, e_ in enumerate(ev):
        if e_[0] == "bar":
            k.c(f"---- barrier {nbar} cert {e_[1]} issue {e_[2]}")
            while dmaq: emit_group(dmaq.pop(0))
            stamp(k, 9, nbar)
            k.wait_vm(*[("st", s) for s in e_[1]])
            stamp(k, 10, nbar)
            k.e("s_barrier")
            stamp(k, 11, nbar)
            for s in e_[2]: dmaq += stage_ops(s)
            nbar += 1
            continue
        if e_[0] == "idle":
            k.c("---- idle: drain")
            k.e("s_nop 7")
            while any(f[3] for f in fill): emit_fill(1, 1 << 30)
            continue
        _, u, s = e_
        for j in range(4):
            while nread < len(flat) and nread <= idx + D - 1 and certat[flat[nread][1]] < ei:
                for r in reads(nread): k.lds(r, ("rd", nread))
                nread += 1
            k.wait_lg(("rd", idx))
            buf = AF0 + 4 * (idx % NAF)
            A = ACC0 + 16 * u
            kk = (s % 9) * 4 + j
            cin = "0" if kk == 0 else vr(A, 16)
            if kk == 0:
                assert not any(f[2] == u and f[3] for f in fill), f"acc not drained u={u} s={s}"
            a, b = vr(buf, 4), vr(X0 + 4 * kk, 4)
            if role == "kv" and s >= 18 and u == 1: a, b = b, a
            k.e(f"v_mfma_f32_32x32x16_bf16 {vr(A,16)}, {a}, {b}, {cin}")
            if kk == 35:
                ep = epilogue(u, s // 9)
                nacc = 16 if role == "ffn" else 8
                for n_, op in enumerate(ep): fill.append((idx + 3, op, u, n_ < nacc))
            if nread < len(flat) and nread <= idx + D and certat[flat[nread][1]] < ei:
                for r in reads(nread): k.lds(r, ("rd", nread))
                nread += 1
            if dmaq: emit_group(dmaq.pop(0))
            emit_fill(FRATE, idx)
            idx += 1
    k.e("s_nop 15")
    emit_fill(10000, 1 << 30)
    stamp(k, 9, 30)
    if STAMP: k.wait_vm0()
    stamp(k, 10, 30)
    rstamp(k, 9, 33)
    stamp_dump(k, (9, 10, 11), 24)
    k.e("s_endpgm")

def k1():
    k = K("gemm1_kernel")
    k.e("s_cmp_ge_u32 s2, 256")
    k.e("s_cbranch_scc1 L_g1_end")
    k.e("s_load_dwordx8 s[56:63], s[0:1], 0")
    k.e("s_load_dwordx4 s[64:67], s[0:1], 48")
    k.e("s_load_dwordx2 s[68:69], s[0:1], 88")
    k.e("v_lshrrev_b32 v9, 6, v0")
    k.e("v_and_b32 v0, 63, v0")
    k.e("v_readfirstlane_b32 s3, v9")
    k.e("s_lshr_b32 s5, s2, 3")
    k.e("s_and_b32 s4, s5, 7")
    k.e("s_lshr_b32 s5, s5, 3")
    k.e("s_and_b32 s70, s2, 7")
    k.e("s_lshl_b32 s70, s70, 2")
    k.e("s_add_u32 s5, s5, s70")
    k.e("s_cmp_eq_u32 s5, 31")
    k.e("s_cbranch_scc1 L_g1_end")
    k.e("s_lshl_b32 s6, s3, 10")
    k.e("s_cmp_ge_u32 s3, 4")
    k.e("s_cselect_b32 s7, 32, 0")
    k.e("s_add_u32 s7, s7, s6")
    k.e("s_lshl_b32 s71, s4, 3")
    k.e("s_add_u32 s71, s71, s3")
    k.e("s_mul_i32 s39, s71, 36864")
    if ROT:
        k.e("s_and_b32 s80, s5, 3")
        k.e("s_lshl_b32 s80, s80, 1")
        k.e("s_add_u32 s80, s80, s4")
        k.e("s_cmp_ge_u32 s80, 9")
        k.e("s_cselect_b32 s81, 9, 0")
        k.e("s_sub_u32 s80, s80, s81")
    else:
        k.e("s_mov_b32 s80, 0")
    for s in range(1, 9):
        k.e(f"s_add_u32 s{80+s}, s{79+s}, 1")
        k.e(f"s_cmp_eq_u32 s{80+s}, 9")
        k.e(f"s_cselect_b32 s{80+s}, 0, s{80+s}")
    k.e("v_bfe_u32 v9, v0, 4, 1")
    k.e("v_lshrrev_b32 v10, 5, v0")
    k.e("v_bfe_u32 v11, v0, 2, 2")
    k.e("v_lshl_add_u32 v10, v10, 3, v11")
    k.e("v_and_b32 v13, 3, v0")
    k.e("v_lshlrev_b32 v13, 3, v13")
    k.e("v_mul_u32_u24 v3, 8256, v9")
    k.e("v_lshl_add_u32 v3, v10, 7, v3")
    k.e("v_add_u32 v3, v3, v13")
    k.e("v_bfe_u32 v14, v0, 3, 1")
    k.e("v_lshlrev_b32 v14, 5, v14")
    k.e("v_xor_b32 v15, 32, v14")
    k.e("v_add_u32 v4, v3, v15")
    k.e("v_add_u32 v3, v3, v14")
    k.e(f"v_add_u32 v5, {4*SLOT}, v3")
    k.e(f"v_add_u32 v6, {4*SLOT}, v4")
    k.e("v_lshl_add_u32 v8, v10, 6, v13")
    k.e("v_lshrrev_b32 v10, 3, v0")
    k.e("s_lshl_b32 s72, s3, 3")
    k.e("v_add_u32 v10, s72, v10")
    k.e("v_bfe_u32 v11, v0, 4, 1")
    k.e("v_lshlrev_b32 v11, 1, v11")
    k.e("v_and_b32 v13, 7, v0")
    k.e("v_xor_b32 v11, v11, v13")
    k.e("v_lshlrev_b32 v11, 4, v11")
    k.e("v_lshrrev_b32 v13, 2, v0")
    k.e("s_and_b32 s72, s3, 3")
    k.e("s_lshl_b32 s72, s72, 4")
    k.e("v_add_u32 v13, s72, v13")
    k.e("v_and_b32 v14, 3, v0")
    k.e("v_lshlrev_b32 v14, 4, v14")
    k.e("v_lshlrev_b32 v0, 4, v0")
    k.e("s_waitcnt lgkmcnt(0)")
    k.srd(24, 68, WS_BYTES)
    k.e("s_cmp_ge_u32 s5, 29")
    k.e("s_cbranch_scc1 L_g1_q")
    k.srd(8, 64, 576 * 9216)
    k.srd(12, 66, 576 * 9216)
    k.e("s_cmp_ge_u32 s3, 4")
    k.e("s_cselect_b32 s16, s66, s64")
    k.e("s_cselect_b32 s17, s67, s65")
    k.e(f"s_mov_b32 s18, {576*9216}")
    k.e("s_mov_b32 s19, 0x00020000")
    k.e("s_lshl_b32 s73, s5, 1")
    k.e("s_cmp_eq_u32 s5, 28")
    k.e("s_cselect_b32 s73, 70, s73")
    k.e("s_lshl_b32 s32, s73, 7")
    k.e("s_mov_b32 s33, s32")
    k.e("s_add_u32 s34, s32, 128")
    k.e("s_mov_b32 s35, s34")
    k.e("s_min_u32 s74, s5, 27")
    k.e("s_lshl_b32 s36, s74, 6")
    k.e(f"s_add_u32 s36, s36, {56*128}")
    k.e(f"s_mov_b32 s37, {64*9216}")
    k.e(f"s_mov_b32 s38, {64*9216}")
    k.e("s_mul_i32 s75, s71, 288*1024")
    k.e(f"s_add_u32 s75, s75, {HF}")
    k.e("s_lshl_b32 s40, s73, 12")
    k.e("s_add_u32 s40, s40, s75")
    k.e("s_add_u32 s41, s40, 4096")
    k.e("s_lshl_b32 s42, s74, 11")
    k.e(f"s_add_u32 s42, s42, {56*4096}")
    k.e("s_add_u32 s42, s42, s75")
    k.e(f"s_mov_b32 s46, {f32(-LOG2E)}")
    k.e("v_mul_u32_u24 v1, 9216, v10")
    k.e("v_add_u32 v1, v1, v11")
    k.e("v_mul_u32_u24 v2, 9216, v13")
    k.e("v_add_u32 v2, v2, v14")
    k.e("v_mul_u32_u24 v7, 4128, v9")
    k.e("v_add_u32 v7, v7, v8")
    k.e(f"v_add_u32 v8, {4*SLOT}, v7")
    k1_stream(k, "ffn")
    k.vm = []; k.lg = []
    k.label("L_g1_q")
    k.srd(8, 58, 576 * 1152)
    k.srd(12, 58, 576 * 1152)
    k.e(f"s_mov_b32 s37, {64*1152}")
    k.e("v_mul_u32_u24 v1, 1152, v10")
    k.e("v_add_u32 v1, v1, v11")
    k.e("s_mul_i32 s75, s71, 36*1024")
    k.e(f"s_add_u32 s75, s75, {QN}")
    k.e("s_cmp_eq_u32 s5, 30")
    k.e("s_cbranch_scc1 L_g1_kv")
    k.srd(16, 58, 576 * 1152)
    for i, L in enumerate((0, 1, 2, 3)): k.e(f"s_mov_b32 s{32+i}, {L*128}")
    k.e("s_cmp_ge_u32 s3, 4")
    k.e("s_cselect_b32 s36, 64, 0")
    k.e("s_add_u32 s36, s36, 1024")
    k.e(f"s_mov_b32 s38, {64*1152}")
    for r, cs in ((40, 0), (43, 4), (41, 8), (44, 12), (42, 32), (45, 34)): k.e(f"s_add_u32 s{r}, s75, {cs*1024}")
    k.e("v_mul_u32_u24 v2, 1152, v13")
    k.e("v_add_u32 v2, v2, v14")
    k.e("v_mul_u32_u24 v7, 4128, v9")
    k.e("v_add_u32 v7, v7, v8")
    k.e(f"v_add_u32 v8, {4*SLOT}, v7")
    k1_stream(k, "q")
    k.vm = []; k.lg = []
    k.label("L_g1_kv")
    k.e("s_cmp_ge_u32 s3, 4")
    k.e("s_cselect_b32 s16, s62, s60")
    k.e("s_cselect_b32 s17, s63, s61")
    k.e(f"s_mov_b32 s18, {576*36}")
    k.e("s_mov_b32 s19, 0x00020000")
    for i, L in enumerate((4, 5, 6, 7)): k.e(f"s_mov_b32 s{32+i}, {L*128}")
    k.e("s_mov_b32 s36, 0")
    k.e(f"s_mov_b32 s38, {64*36}")
    for r, cs in ((40, 16), (43, 20), (41, 24), (44, 28)): k.e(f"s_add_u32 s{r}, s75, {cs*1024}")
    k.e("s_lshr_b32 s76, s71, 1")
    k.e("s_mul_i32 s76, s76, 7168")
    k.e(f"s_add_u32 s76, s76, {KV}")
    k.e("s_and_b32 s77, s71, 1")
    k.e("s_mul_i32 s42, s77, 3072")
    k.e("s_add_u32 s42, s42, s76")
    k.e("s_lshl_b32 s45, s77, 8")
    k.e("s_add_u32 s45, s45, s76")
    k.e("s_add_u32 s45, s45, 6144")
    k.e("s_lshl_b32 s48, s71, 2")
    k.e(f"s_add_u32 s48, s48, {KN}")
    k.e(f"s_mov_b32 s46, {f32(LOG2E / math.sqrt(18.0))}")
    k.e("v_mul_u32_u24 v2, 36, v13")
    k.e("v_add_u32 v2, v2, v14")
    k.e("v_lshl_add_u32 v7, v9, 5, v8")
    k.e(f"v_add_u32 v8, {4*SLOT}, v7")
    k1_stream(k, "kv")
    k.label("L_g1_end")
    k.e("s_endpgm")
    return k, 256

def build(kernels, launches, path):
    hdr = open("cdna_kernels/" + NAME + ".s.ref").read().split("; Override launch geometry")[0]
    s = hdr
    for (n, g, b, l) in launches:
        s += f"; @launch kernel={n} grid=({g},1,1) block=({b},1,1) lds={l}\n"
    s += '.amdgcn_target "amdgcn-amd-amdhsa--gfx950"\n.text\n'
    kds = ""
    bad = 0
    for k, nv in kernels:
        bad += fix_hazards(k.lines, k.name)
        t, kd = k.text(nv)
        s += t; kds += kd
    s += kds
    open(path, "w").write(s)
    print("hazards:", bad, "bytes:", len(s))

if __name__ == "__main__":
    ks = [k0(), k1()]
    launches = [("ln_kernel", 256, 512, 0), ("gemm1_kernel", 256, 512, NSLOT * SLOT)]
    build(ks, launches, sys.argv[1] if len(sys.argv) > 1 else "out.s")
```
